```python
import torch

def _softmax(x, axis=-1):
    return torch.softmax(x, dim=axis)
def _gelu(x):
    return torch.nn.functional.gelu(x, approximate="tanh")
def _silu(x):
    return torch.nn.functional.silu(x)
def _sigmoid(x):
    return torch.sigmoid(x)
def _layernorm(x, axis=-1, eps=1e-5):
    m = x.mean(dim=axis, keepdim=True)
    v = x.var(dim=axis, keepdim=True, unbiased=False)
    return (x - m) / torch.sqrt(v + eps)
def _scatter_add(tgt, idx, src, axis=0):
    return tgt.clone().index_add_(axis, idx, src)
def _segment_sum(src, seg, n):
    out = torch.zeros((n,) + src.shape[1:], dtype=src.dtype)
    return out.index_add_(0, seg, src)
def _pad(x, pw):
    flat = tuple(v for pair in reversed(pw) for v in pair)
    return torch.nn.functional.pad(x, flat)

kernel_name = 'concat_heads__grouped_kv_mqa__sliding_local_dilated__prompt'

def setup_inputs():

    _w = (lambda a: (lambda t: t.to(torch.bfloat16) if t.is_floating_point() else t)(torch.as_tensor(a)))
    def _A_setup():
        B, S, D, H = 1, 2048, 448, 16
        Dh = D // H
        return {
            "x": _w((lambda *s: torch.randn(*s, dtype=torch.bfloat16) * 0.05)(B, S, D)),
            "wq": _w((lambda *s: torch.randn(*s, dtype=torch.bfloat16) * 3.2)(D, H * Dh)),
            "wk": _w((lambda *s: torch.randn(*s, dtype=torch.bfloat16) * 3.2)(D, Dh)),
            "wv": _w((lambda *s: torch.randn(*s, dtype=torch.bfloat16) * 1.6)(D, Dh)),
            "wo": _w((lambda *s: torch.randn(*s, dtype=torch.bfloat16) * 1.6)(H * Dh, D)),
        }
    _A_in = _A_setup()

    def _B_setup():
        B, S, D = 1, 2048, 448
        return {
            "x": _w((lambda *s: torch.randn(*s, dtype=torch.bfloat16) * 0.1)(B, S, D)),
            "wqkv": _w((lambda *s: torch.randn(*s, dtype=torch.bfloat16) * 0.8)(D, 3 * D)),
            "wo": _w((lambda *s: torch.randn(*s, dtype=torch.bfloat16) * 0.8)(D, D)),
        }
    _B_in = _B_setup()

    return {
        "A_x": _A_in["x"],
        "A_wq": _A_in["wq"],
        "A_wk": _A_in["wk"],
        "A_wv": _A_in["wv"],
        "A_wo": _A_in["wo"],
        "B_x": _B_in["x"],
        "B_wqkv": _B_in["wqkv"],
        "B_wo": _B_in["wo"],
    }

def reference(A_x, A_wq, A_wk, A_wv, A_wo, B_x, B_wqkv, B_wo):
    def _A_ref(x, wq, wk, wv, wo):
        B, S, D = x.shape
        H = 16
        Dh = D // H
        q = (lambda x, *d: x.permute(*d))((x @ wq).reshape(B, S, H, Dh), 0, 2, 1, 3)
        k = x @ wk
        v = x @ wv
        scores = torch.einsum("bhqd,bkd->bhqk", q, k) * (Dh ** -0.5)
        p = _softmax(scores, axis=-1)
        o = torch.einsum("bhqk,bkd->bhqd", p, v)
        return (lambda x, *d: x.permute(*d))(o, 0, 2, 1, 3).reshape(B, S, H * Dh) @ wo

    def _B_ref(x, wqkv, wo):
        B, S, D = x.shape
        H = 16; Dh = D // H
        W, dil = 8, 2
        qkv = (lambda x, *d: x.permute(*d))((x @ wqkv).reshape(B, S, 3, H, Dh), 2, 0, 3, 1, 4)
        q, k, v = qkv[0], qkv[1], qkv[2]
        scale = Dh ** -0.5
        pos = torch.arange(S)
        off = torch.arange(W) * dil
        idx = pos[:, None] - off[None, :]
        mask = idx >= 0
        idx_c = torch.where(mask, idx, 0).reshape(-1)
        kg = k[:, :, idx_c, :].reshape(B, H, S, W, Dh)
        vg = v[:, :, idx_c, :].reshape(B, H, S, W, Dh)
        logits = torch.einsum("bhsd,bhswd->bhsw", q, kg) * scale
        logits = torch.where(mask[None, None, :, :], logits, -1e9)
        attn = _softmax(logits, axis=-1)
        o = torch.einsum("bhsw,bhswd->bhsd", attn, vg)
        return (lambda x, *d: x.permute(*d))(o, 0, 2, 1, 3).reshape(B, S, D) @ wo

    a = _A_ref(A_x, A_wq, A_wk, A_wv, A_wo)
    b = _B_ref(B_x, B_wqkv, B_wo)
    return torch.concatenate([a, b], axis=-1)
```

```python
import struct, math
L=[]
def e(s): L.append("    "+s)
def lab(s): L.append(s+":")
def f32(x): return "0x%08x"%struct.unpack("<I",struct.pack("<f",x))[0]
CS=f32(28**-0.5*math.log2(math.e))
QF=0; KV=0x200000; QKVB=0x300000; OA=0x900000; OB=0xB00000
XP=144; WP=320; XB=128*XP; STG=XB+64*WP

def srd(d,b,size):
    e(f"s_mov_b32 s{d}, s{b}"); e(f"s_and_b32 s{d+1}, s{b+1}, 0xffff")
    e(f"s_mov_b32 s{d+2}, {size}"); e(f"s_mov_b32 s{d+3}, 0x20000")

def gemm_core(NT, kv=False):
    nW = 4 if NT==128 else 2
    ntn = NT//64
    e("v_lshrrev_b32 v12, 3, v0"); e("v_and_b32 v13, 7, v0")
    e("v_mul_u32_u24 v2, 896, v12"); e("v_lshl_add_u32 v2, v13, 4, v2"); e("v_add_u32 v2, s32, v2")
    for i in range(1,4): e(f"v_add_u32 v{2+i}, {28672*i}, v2")
    e(f"v_mul_u32_u24 v10, {XP}, v12"); e("v_lshl_add_u32 v10, v13, 4, v10")
    if not kv:
        sh = 4 if NT==128 else 3
        e(f"v_lshrrev_b32 v12, {sh}, v0"); e(f"v_and_b32 v13, {(1<<sh)-1}, v0")
        e("v_mul_lo_u32 v6, s33, v12"); e("v_lshl_add_u32 v6, v13, 4, v6"); e("v_add_u32 v6, s34, v6")
        rows = 256>>sh
        e(f"s_mul_i32 s35, s33, {rows}")
        for i in range(1,nW): e(f"v_add_u32 v{6+i}, s35, v{5+i}")
        e(f"v_mul_u32_u24 v11, {WP}, v12"); e("v_lshl_add_u32 v11, v13, 4, v11"); e(f"v_add_u32 v11, {XB}, v11")
        wstep = rows*WP
    else:
        for i in range(4):
            e(f"v_add_u32 v12, {256*i}, v0")
            e("v_mul_u32_u24 v13, 4682, v12"); e("v_lshrrev_b32 v13, 16, v13")
            e("v_mul_u32_u24 v14, 14, v13"); e("v_sub_u32 v14, v12, v14")
            e("v_cmp_gt_u32 vcc, 7, v14"); e("v_subrev_u32 v15, 7, v14"); e("s_nop 1")
            e("v_cndmask_b32 v15, v15, v14, vcc")
            e(f"v_mul_u32_u24 v{6+i}, 56, v13"); e(f"v_lshl_add_u32 v{6+i}, v15, 3, v{6+i}")
            e("v_mov_b32 v16, 64"); e("v_cndmask_b32 v16, v16, 0, vcc")
            e(f"v_mul_u32_u24 v{44+i}, {WP}, v13"); e(f"v_lshl_add_u32 v{44+i}, v15, 3, v{44+i}")
            e(f"v_add_u32 v{44+i}, v{44+i}, v16"); e(f"v_add_u32 v{44+i}, {XB}, v{44+i}")
            e(f"v_cndmask_b32 v{48+i}, 0, 1, vcc")
            e("v_cmp_lt_u32 vcc, 63, v13"); e("v_mov_b32 v16, 0x7fffff00"); e("s_nop 0")
            e(f"v_cndmask_b32 v{6+i}, v{6+i}, v16, vcc")
            e(f"v_mov_b32 v16, {XB+63*WP+256}"); e(f"v_cndmask_b32 v{44+i}, v{44+i}, v16, vcc")
    e("v_and_b32 v12, 31, v1"); e("v_lshrrev_b32 v13, 5, v1")
    e("s_lshl_b32 s35, s36, 6"); e("v_add_u32 v12, s35, v12")
    e(f"v_mul_u32_u24 v52, {XP}, v12"); e("v_lshl_add_u32 v52, v13, 4, v52")
    e("v_bfe_u32 v12, v1, 2, 2"); e("v_lshl_add_u32 v12, v13, 3, v12")
    e(f"v_mul_u32_u24 v53, {WP}, v12"); e("v_bfe_u32 v12, v1, 4, 1"); e("v_and_b32 v13, 3, v1")
    e("v_lshlrev_b32 v12, 5, v12"); e("v_lshl_add_u32 v12, v13, 3, v12"); e("v_add_u32 v53, v53, v12")
    e(f"s_mul_i32 s35, s37, {NT}"); e("v_add_u32 v53, s35, v53"); e(f"v_add_u32 v53, {XB}, v53")
    for r in range(32*ntn): e(f"v_mov_b32 v{64+r}, 0")
    def gload(c):
        e(f"s_mov_b32 s38, {c*128}")
        for i in range(4): e(f"buffer_load_dwordx4 v[{16+4*i}:{19+4*i}], v{2+i}, s[24:27], s38 offen")
        if not kv:
            e(f"s_mul_i32 s38, s33, {c*64}")
            for i in range(nW): e(f"buffer_load_dwordx4 v[{32+4*i}:{35+4*i}], v{6+i}, s[28:31], s38 offen")
        else:
            e(f"s_mov_b32 s38, {c*64*56}")
            for i in range(4):
                e(f"buffer_load_dwordx2 v[{32+2*i}:{33+2*i}], v{6+i}, s[28:31], s38 offen")
                e(f"buffer_load_dwordx2 v[{40+2*i if i<2 else 0}:{41+2*i if i<2 else 0}], v{6+i}, s[40:43], s38 offen") if False else None
            for i in range(4):
                e(f"buffer_load_dwordx2 v[{56+2*i}:{57+2*i}], v{6+i}, s[40:43], s38 offen")
    def dswrite(b):
        e("s_waitcnt vmcnt(0)")
        for i in range(4): e(f"ds_write_b128 v10, v[{16+4*i}:{19+4*i}] offset:{b*STG+i*32*XP}")
        if not kv:
            for i in range(nW): e(f"ds_write_b128 v11, v[{32+4*i}:{35+4*i}] offset:{b*STG+i*wstep}")
        else:
            for i in range(4):
                e(f"v_cmp_ne_u32 vcc, 0, v{48+i}"); e("s_nop 1")
                e(f"v_cndmask_b32 v{32+2*i}, v{56+2*i}, v{32+2*i}, vcc"); e(f"v_cndmask_b32 v{33+2*i}, v{57+2*i}, v{33+2*i}, vcc")
                e(f"ds_write_b64 v{44+i}, v[{32+2*i}:{33+2*i}] offset:{b*STG}")
        e("s_waitcnt lgkmcnt(0)"); e("s_barrier")
    gload(0); dswrite(0)
    for c in range(7):
        b=c%2
        if c<6: gload(c+1)
        for ks in range(4):
            for tm in range(2): e(f"ds_read_b128 v[{128+4*tm}:{131+4*tm}], v52 offset:{b*STG+tm*32*XP+ks*32}")
            for tn in range(ntn):
                for q in range(2):
                    e(f"ds_read_b64_tr_b16 v[{136+4*tn+2*q}:{137+4*tn+2*q}], v53 offset:{b*STG+(ks*16+4*q)*WP+tn*64}")
            e("s_waitcnt lgkmcnt(0)")
            for tn in range(ntn):
                for tm in range(2):
                    a=64+16*(tn*2+tm)
                    e(f"v_mfma_f32_32x32x16_bf16 v[{a}:{a+15}], v[{136+4*tn}:{139+4*tn}], v[{128+4*tm}:{131+4*tm}], v[{a}:{a+15}]")
        if c<6: dswrite(1-b)
    e("s_nop 15")

def wave_ids():
    e("v_and_b32 v1, 63, v0"); e("v_lshrrev_b32 v2, 6, v0"); e("s_nop 0"); e("v_readfirstlane_b32 s35, v2")
    e("s_and_b32 s36, s35, 1"); e("s_lshr_b32 s37, s35, 1")

def epi_pos_n(NT):
    e("v_and_b32 v2, 31, v1"); e("s_lshl_b32 s35, s36, 6"); e("s_add_u32 s35, s35, s39"); e("v_add_u32 v2, s35, v2")
    e("v_lshrrev_b32 v3, 5, v1"); e("v_lshlrev_b32 v3, 2, v3"); e(f"s_mul_i32 s35, s37, {NT//2}"); e("v_add_u32 v3, s35, v3")

HDR=open('hdr.txt').read()
def k1():
    lab2("k1_kernel")
    e("s_cmp_ge_u32 s2, 256"); e("s_cbranch_scc1 K1_END")
    e("s_load_dwordx8 s[4:11], s[0:1], 0"); e("s_load_dwordx4 s[12:15], s[0:1], 40"); e("s_load_dwordx2 s[16:17], s[0:1], 80")
    e("s_and_b32 s39, s2, 15"); e("s_lshr_b32 s3, s2, 4"); e("s_mul_i32 s32, s39, 114688"); e("s_lshl_b32 s39, s39, 7")
    wave_ids()
    e("s_waitcnt lgkmcnt(0)")
    srd(44,16,0x10000000)
    e("s_cmp_ge_u32 s3, 5"); e("s_cbranch_scc1 K1_B")
    srd(24,4,1835008)
    e("s_cmp_eq_u32 s3, 4"); e("s_cbranch_scc1 K1_KV")
    srd(28,6,401408); e("s_mov_b32 s33, 896"); e("s_lshl_b32 s34, s3, 8")
    gemm_core(128)
    epi_pos_n(128)
    e("s_lshl_b32 s35, s3, 7"); e("v_add_u32 v3, s35, v3"); e(f"s_mov_b32 s38, {CS}"); e("v_mov_b32 v10, 0"); e("v_mov_b32 v11, 0")
    for tn in range(2):
      for g in range(4):
        e(f"v_add_u32 v4, {32*tn+8*g}, v3")
        e("v_mul_u32_u24 v5, 9363, v4"); e("v_lshrrev_b32 v5, 18, v5")
        e("v_mul_u32_u24 v6, 28, v5"); e("v_sub_u32 v6, v4, v6")
        e("v_lshrrev_b32 v7, 2, v5"); e("v_lshlrev_b32 v7, 11, v7"); e("v_lshrrev_b32 v12, 3, v6"); e("v_lshl_add_u32 v7, v12, 9, v7")
        e("v_and_b32 v12, 3, v5"); e("v_lshl_add_u32 v7, v12, 7, v7"); e("v_and_b32 v12, 7, v6"); e("v_lshl_add_u32 v7, v12, 1, v7")
        for tm in range(2):
            a=64+16*(tn*2+tm)+4*g
            e(f"v_add_u32 v13, {32*tm}, v2"); e("v_lshrrev_b32 v14, 3, v13"); e("v_lshlrev_b32 v14, 13, v14"); e("v_and_b32 v13, 7, v13")
            e("v_lshl_add_u32 v14, v13, 4, v14"); e("v_add_u32 v14, v14, v7")
            for i in range(4): e(f"v_mul_f32 v{a+i}, s38, v{a+i}")
            e(f"v_cvt_pk_bf16_f32 v8, v{a}, v{a+1}"); e(f"v_cvt_pk_bf16_f32 v9, v{a+2}, v{a+3}")
            e("v_cmp_gt_u32 vcc, 448, v4"); e("s_and_saveexec_b64 s[48:49], vcc")
            e("v_cmp_eq_u32 vcc, 24, v6"); e("s_and_saveexec_b64 s[50:51], vcc")
            e("buffer_store_dwordx4 v[8:11], v14, s[44:47], 0 offen")
            e("s_andn2_b64 exec, s[50:51], exec")
            e("buffer_store_dwordx2 v[8:9], v14, s[44:47], 0 offen")
            e("s_mov_b64 exec, s[48:49]"); e("s_nop 1")
    e("s_endpgm")
    lab("K1_KV")
    srd(28,8,25088); srd(40,10,25088)
    gemm_core(128, kv=True)
    epi_pos_n(128)
    e("s_cmp_lg_u32 s37, 0"); e("s_cbranch_scc1 K1_END")
    e("v_mov_b32 v10, 0"); e("v_mov_b32 v11, 0"); e("v_mov_b32 v15, 0x3f80"); e("v_mov_b32 v16, 0")
    for tn in range(2):
      for g in range(4):
        e(f"v_add_u32 v6, {8*g}, v3")
        for tm in range(2):
            a=64+16*(tn*2+tm)+4*g
            e(f"v_add_u32 v13, {32*tm}, v2"); e("v_lshrrev_b32 v14, 5, v13"); e("v_lshlrev_b32 v14, 12, v14"); e(f"v_add_u32 v14, {KV}, v14")
            e("v_and_b32 v13, 31, v13")
            e("v_cmp_gt_u32 vcc, 28, v6"); e("s_and_saveexec_b64 s[48:49], vcc")
            if tn==0:
                e("v_lshl_add_u32 v14, v13, 4, v14"); e("v_lshrrev_b32 v12, 3, v6"); e("v_lshl_add_u32 v14, v12, 9, v14")
                e("v_and_b32 v12, 7, v6"); e("v_lshl_add_u32 v14, v12, 1, v14")
                e(f"v_cvt_pk_bf16_f32 v8, v{a}, v{a+1}"); e(f"v_cvt_pk_bf16_f32 v9, v{a+2}, v{a+3}")
                e("v_cmp_eq_u32 vcc, 24, v6"); e("s_and_saveexec_b64 s[50:51], vcc")
                e("buffer_store_dwordx4 v[8:11], v14, s[44:47], 0 offen")
                e("s_andn2_b64 exec, s[50:51], exec")
                e("buffer_store_dwordx2 v[8:9], v14, s[44:47], 0 offen")
            else:
                e("v_lshrrev_b32 v12, 4, v13"); e("v_lshl_add_u32 v14, v12, 10, v14"); e("v_bfe_u32 v12, v13, 2, 1"); e("v_lshl_add_u32 v14, v12, 9, v14")
                e("v_bfe_u32 v12, v13, 3, 1"); e("v_lshl_add_u32 v14, v12, 3, v14"); e("v_and_b32 v12, 3, v13"); e("v_lshl_add_u32 v14, v12, 1, v14")
                e("v_lshl_add_u32 v14, v6, 4, v14"); e("v_add_u32 v14, 2048, v14")
                e(f"v_cvt_pk_bf16_f32 v8, v{a}, v{a+1}"); e(f"v_cvt_pk_bf16_f32 v9, v{a+2}, v{a+3}")
                e("buffer_store_short v8, v14, s[44:47], 0 offen"); e("buffer_store_short_d16_hi v8, v14, s[44:47], 0 offen offset:16")
                e("buffer_store_short v9, v14, s[44:47], 0 offen offset:32"); e("buffer_store_short_d16_hi v9, v14, s[44:47], 0 offen offset:48")
                e("v_cmp_eq_u32 vcc, 24, v6"); e("s_and_saveexec_b64 s[50:51], vcc")
                e("buffer_store_short v15, v14, s[44:47], 0 offen offset:64")
                for o in (80,96,112): e(f"buffer_store_short v16, v14, s[44:47], 0 offen offset:{o}")
            e("s_mov_b64 exec, s[48:49]"); e("s_nop 1")
    e("s_endpgm")
    lab("K1_B")
    srd(24,12,1835008); srd(28,14,1204224); e("s_mov_b32 s33, 2688"); e("s_sub_u32 s3, s3, 5"); e("s_lshl_b32 s34, s3, 8")
    gemm_core(128)
    epi_pos_n(128)
    e("s_lshl_b32 s35, s3, 7"); e("v_add_u32 v3, s35, v3")
    for tn in range(2):
      for g in range(4):
        e(f"v_add_u32 v4, {32*tn+8*g}, v3")
        for tm in range(2):
            a=64+16*(tn*2+tm)+4*g
            e(f"v_add_u32 v13, {32*tm}, v2"); e("v_mul_u32_u24 v14, 2688, v13"); e("v_lshl_add_u32 v14, v4, 1, v14"); e(f"v_add_u32 v14, {QKVB}, v14")
            e(f"v_cvt_pk_bf16_f32 v8, v{a}, v{a+1}"); e(f"v_cvt_pk_bf16_f32 v9, v{a+2}, v{a+3}")
            e("v_cmp_gt_u32 vcc, 1344, v4"); e("s_and_saveexec_b64 s[48:49], vcc")
            e("buffer_store_dwordx2 v[8:9], v14, s[44:47], 0 offen")
            e("s_mov_b64 exec, s[48:49]"); e("s_nop 1")
    lab("K1_END"); e("s_endpgm")

def lab2(n):
    L.append(".p2align 8"); L.append(f".globl {n}"); L.append(f".type {n},@function"); lab(n)

def k2():
    lab2("k2_kernel")
    e("s_cmp_ge_u32 s2, 320"); e("s_cbranch_scc1 K2_END")
    e("s_load_dwordx2 s[16:17], s[0:1], 80"); e("s_waitcnt lgkmcnt(0)"); srd(44,16,0x10000000)
    e("s_cmp_ge_u32 s2, 256"); e("s_cbranch_scc1 K2_B")
    e("v_and_b32 v1, 63, v0"); e("v_lshrrev_b32 v2, 6, v0"); e("s_nop 0"); e("v_readfirstlane_b32 s3, v2")
    e("s_and_b32 s4, s3, 3"); e("s_lshr_b32 s5, s3, 2")
    e("s_lshl_b32 s6, s2, 2"); e("s_add_u32 s6, s6, s4"); e("s_lshl_b32 s6, s6, 11")
    e("v_lshlrev_b32 v2, 4, v1")
    e("buffer_load_dwordx4 v[8:11], v2, s[44:47], s6 offen"); e("buffer_load_dwordx4 v[12:15], v2, s[44:47], s6 offen offset:1024")
    e("s_lshl_b32 s7, s5, 5"); e("s_add_u32 s7, s7, s4"); e("s_lshl_b32 s7, s7, 12"); e(f"s_add_u32 s7, s7, {KV}")
    e("s_lshl_b32 s8, s3, 12")
    e("s_lshl_b32 s9, s5, 14"); e("v_add_u32 v3, s9, v2")
    for r in range(16): e(f"v_mov_b32 v{32+r}, 0"); e(f"v_mov_b32 v{64+r}, 0")
    e("v_mov_b32 v4, 0")
    e("s_mov_b32 s10, 0xff800000"); e("s_mov_b32 s11, 0xff800000")
    def dma():
        e("s_mov_b32 m0, s8"); e("s_nop 0")
        for i in range(4): e(f"buffer_load_dwordx4 v2, s[44:47], s7 offen offset:{i*1024} lds")
        e("s_add_u32 s7, s7, 16384"); e("s_xor_b32 s8, s8, 32768")
    dma(); e("s_mov_b32 s12, 0")
    lab("K2_LOOP")
    e("s_waitcnt vmcnt(0)"); e("s_barrier")
    e("s_cmp_eq_u32 s12, 7"); e("s_cbranch_scc1 K2_NODMA"); dma(); lab("K2_NODMA")
    for tt in range(4):
        for u in range(2): e(f"ds_read_b128 v[{16+4*u}:{19+4*u}], v3 offset:{tt*4096+u*1024}")
        for u in range(2): e(f"ds_read_b128 v[{24+4*u}:{27+4*u}], v3 offset:{tt*4096+2048+u*1024}")
        e("s_waitcnt lgkmcnt(2)")
        e("v_mfma_f32_32x32x16_bf16 v[48:63], v[16:19], v[8:11], v[32:47]")
        e("v_mfma_f32_32x32x16_bf16 v[48:63], v[20:23], v[12:15], v[48:63]")
        e("s_nop 15")
        e("v_max3_f32 v5, v48, v49, v50")
        for r in range(51,63,2): e(f"v_max3_f32 v5, v5, v{r}, v{r+1}")
        e("v_max_f32 v5, v5, v63")
        e("v_cmp_lt_f32 vcc, s10, v5"); e(f"s_cbranch_vccnz K2_SLOW{tt}")
        lab(f"K2_BACK{tt}")
        for r in range(16): e(f"v_exp_f32 v{48+r}, v{48+r}")
        e("s_nop 0")
        for r in range(8): e(f"v_cvt_pk_bf16_f32 v{48+r}, v{48+2*r}, v{49+2*r}")
        e("s_waitcnt lgkmcnt(0)"); e("s_nop 1")
        e("v_mfma_f32_32x32x16_bf16 v[64:79], v[24:27], v[48:51], v[64:79]")
        e("v_mfma_f32_32x32x16_bf16 v[64:79], v[28:31], v[52:55], v[64:79]")
    e("v_xor_b32 v3, 0x8000, v3")
    e("s_add_u32 s12, s12, 1"); e("s_cmp_lt_u32 s12, 8"); e("s_cbranch_scc1 K2_LOOP")
    e("s_branch K2_FIN")
    for tt in range(4):
        lab(f"K2_SLOW{tt}")
        e("v_mov_b32 v6, v5"); e("s_nop 1"); e("v_permlane32_swap_b32 v5, v6"); e("s_nop 1")
        e("v_max_f32 v5, v5, v6"); e("v_max_f32 v5, s11, v5")
        e("v_add_f32 v4, v4, v5"); e("v_sub_f32 v6, 0, v5"); e("v_min_f32 v6, 0x42c80000, v6"); e("v_exp_f32 v6, v6")
        for r in range(16): e(f"v_sub_f32 v{32+r}, v{32+r}, v5"); e(f"v_sub_f32 v{48+r}, v{48+r}, v5")
        for r in range(16): e(f"v_mul_f32 v{64+r}, v{64+r}, v6")
        e("s_mov_b32 s10, 0x41000000"); e("s_mov_b32 s11, 0")
        e(f"s_branch K2_BACK{tt}")
    lab("K2_FIN")
    e("s_nop 15"); e("s_barrier")
    e("s_lshl_b32 s9, s4, 13"); e("v_lshlrev_b32 v3, 2, v1"); e("v_add_u32 v3, s9, v3")
    e("s_cmp_eq_u32 s5, 0"); e("s_cbranch_scc1 K2_H0")
    for r in range(16): e(f"ds_write_b32 v3, v{64+r} offset:{r*256}")
    e("ds_write_b32 v3, v4 offset:4096"); e("s_waitcnt lgkmcnt(0)"); e("s_barrier"); e("s_endpgm")
    lab("K2_H0")
    e("s_barrier")
    for r in range(16): e(f"ds_read_b32 v{32+r}, v3 offset:{r*256}")
    e("ds_read_b32 v5, v3 offset:4096"); e("s_waitcnt lgkmcnt(0)")
    e("v_max_f32 v6, v4, v5"); e("v_sub_f32 v4, v4, v6"); e("v_sub_f32 v5, v5, v6"); e("v_exp_f32 v4, v4"); e("v_exp_f32 v5, v5"); e("s_nop 0")
    for r in range(16): e(f"v_mul_f32 v{64+r}, v{64+r}, v4"); e(f"v_fmac_f32 v{64+r}, v{32+r}, v5")
    e("v_mov_b32 v5, v76"); e("v_mov_b32 v6, v76"); e("s_nop 1"); e("v_permlane32_swap_b32 v5, v6"); e("s_nop 1")
    e("v_rcp_f32 v6, v6"); e("s_nop 0")
    for r in range(16): e(f"v_mul_f32 v{64+r}, v{64+r}, v6")
    e("v_and_b32 v5, 7, v1"); e("s_lshl_b32 s9, s2, 3"); e("v_add_u32 v5, s9, v5"); e("v_mul_u32_u24 v5, 896, v5")
    e("v_bfe_u32 v6, v1, 3, 2"); e("s_lshl_b32 s9, s4, 2"); e("v_add_u32 v6, s9, v6"); e("v_mul_u32_u24 v6, 56, v6"); e("v_add_u32 v5, v5, v6")
    e("v_lshrrev_b32 v6, 5, v1"); e("v_lshl_add_u32 v5, v6, 3, v5"); e(f"v_add_u32 v5, {OA}, v5")
    for g in range(4):
        e(f"v_cvt_pk_bf16_f32 v{32+2*g}, v{64+4*g}, v{65+4*g}"); e(f"v_cvt_pk_bf16_f32 v{33+2*g}, v{66+4*g}, v{67+4*g}")
        if g==3: e("v_cmp_gt_u32 vcc, 32, v1"); e("s_and_saveexec_b64 s[48:49], vcc")
        e(f"buffer_store_dwordx2 v[{32+2*g}:{33+2*g}], v5, s[44:47], 0 offen offset:{16*g}")
    e("s_endpgm")
    lab("K2_B")
    e("s_sub_u32 s3, s2, 256"); e("s_lshl_b32 s3, s3, 9"); e("v_add_u32 v1, s3, v0")
    e("v_lshrrev_b32 v2, 4, v1"); e("v_and_b32 v3, 15, v1"); e("v_mul_u32_u24 v3, 56, v3")
    e("v_mul_u32_u24 v4, 2688, v2"); e("v_add_u32 v4, v4, v3"); e(f"v_add_u32 v4, {QKVB}, v4")
    def ld(dst,va,off):
        for i in range(3): e(f"buffer_load_dwordx4 v[{dst+4*i}:{dst+4*i+3}], v{va}, s[44:47], 0 offen offset:{off+16*i}")
        e(f"buffer_load_dwordx2 v[{dst+12}:{dst+13}], v{va}, s[44:47], 0 offen offset:{off+48}")
    def unp(dst,src):
        for i in range(14):
            e(f"v_and_b32 v{dst+2*i+1}, 0xffff0000, v{src+i}"); e(f"v_lshlrev_b32 v{dst+2*i}, 16, v{src+i}")
    ld(16,4,0); e("s_waitcnt vmcnt(0)"); unp(32,16)
    for w in range(8):
        e(f"v_subrev_u32 v5, {2*w}, v2"); e("v_cmp_gt_i32 vcc, 0, v5"); e("v_max_i32 v5, 0, v5")
        e(f"v_mul_u32_u24 v{8+w}, 2688, v5"); e(f"v_add_u32 v{8+w}, v{8+w}, v3"); e(f"v_add_u32 v{8+w}, {QKVB}, v{8+w}")
        ld(16,8+w,896); e("s_waitcnt vmcnt(0)"); unp(60,16)
        e(f"v_mul_f32 v{88+w}, v32, v60")
        for d in range(1,28): e(f"v_fmac_f32 v{88+w}, v{32+d}, v{60+d}")
        e(f"v_mov_b32 v6, 0xce6e6b28"); e(f"v_mul_f32 v{88+w}, {CS}, v{88+w}"); e(f"v_cndmask_b32 v{88+w}, v{88+w}, v6, vcc")
    e("v_max3_f32 v5, v88, v89, v90"); e("v_max3_f32 v5, v5, v91, v92"); e("v_max3_f32 v5, v5, v93, v94"); e("v_max_f32 v5, v5, v95")
    for w in range(8): e(f"v_sub_f32 v{88+w}, v{88+w}, v5"); e(f"v_exp_f32 v{88+w}, v{88+w}")
    e("s_nop 0"); e("v_add_f32 v5, v88, v89")
    for w in range(2,8): e(f"v_add_f32 v5, v5, v{88+w}")
    e("v_rcp_f32 v5, v5")
    for w in range(8):
        ld(16,8+w,1792); e("s_waitcnt vmcnt(0)"); unp(60,16)
        for d in range(28):
            e(f"v_mul_f32 v{32+d}, v{88}, v{60+d}" if w==0 else f"v_fmac_f32 v{32+d}, v{88+w}, v{60+d}")
    for d in range(28): e(f"v_mul_f32 v{32+d}, v5, v{32+d}")
    for i in range(14): e(f"v_cvt_pk_bf16_f32 v{16+i}, v{32+2*i}, v{33+2*i}")
    e("v_mul_u32_u24 v4, 896, v2"); e("v_add_u32 v4, v4, v3"); e(f"v_add_u32 v4, {OB}, v4")
    for i in range(3): e(f"buffer_store_dwordx4 v[{16+4*i}:{19+4*i}], v4, s[44:47], 0 offen offset:{16*i}")
    e("buffer_store_dwordx2 v[28:29], v4, s[44:47], 0 offen offset:48")
    lab("K2_END"); e("s_endpgm")

def k3():
    lab2("k3_kernel")
    e("s_cmp_ge_u32 s2, 224"); e("s_cbranch_scc1 K3_END")
    e("s_load_dwordx2 s[4:5], s[0:1], 32"); e("s_load_dwordx4 s[8:11], s[0:1], 56"); e("s_load_dwordx2 s[16:17], s[0:1], 80")
    e("s_and_b32 s39, s2, 15"); e("s_lshr_b32 s3, s2, 4"); e("s_mul_i32 s32, s39, 114688"); e("s_lshl_b32 s39, s39, 7")
    wave_ids(); e("s_waitcnt lgkmcnt(0)")
    srd(24,16,0x10000000); srd(44,10,3670016)
    e("s_cmp_ge_u32 s3, 7"); e("s_cselect_b32 s6, s8, s4"); e("s_cselect_b32 s7, s9, s5")
    e(f"s_cselect_b32 s35, {OB-OA}, 0"); e("s_cselect_b32 s41, 7, 0"); e("s_cselect_b32 s40, 896, 0")
    e("s_add_u32 s32, s32, s35"); e(f"s_add_u32 s32, s32, {OA}"); e("s_sub_u32 s3, s3, s41")
    srd(28,6,401408); e("s_mov_b32 s33, 896"); e("s_lshl_b32 s34, s3, 7")
    gemm_core(64)
    epi_pos_n(64)
    e("s_lshl_b32 s35, s3, 6"); e("v_add_u32 v3, s35, v3")
    for g in range(4):
        e(f"v_add_u32 v4, {8*g}, v3")
        for tm in range(2):
            a=64+16*tm+4*g
            e(f"v_add_u32 v13, {32*tm}, v2"); e("v_mul_u32_u24 v14, 1792, v13"); e("v_lshl_add_u32 v14, v4, 1, v14"); e("v_add_u32 v14, s40, v14")
            e(f"v_cvt_pk_bf16_f32 v8, v{a}, v{a+1}"); e(f"v_cvt_pk_bf16_f32 v9, v{a+2}, v{a+3}")
            e("buffer_store_dwordx2 v[8:9], v14, s[44:47], 0 offen"); e("s_nop 1")
    lab("K3_END"); e("s_endpgm")

k1(); k2(); k3()
out=HDR+"\n".join(L)+"\n.section .rodata,\"a\"\n"
for n,v in (("k1_kernel",144),("k2_kernel",96),("k3_kernel",144)):
    out+=f""".p2align 6
.amdhsa_kernel {n}
  .amdhsa_next_free_vgpr {v}
  .amdhsa_next_free_sgpr 64
  .amdhsa_accum_offset {v}
  .amdhsa_group_segment_fixed_size 0
  .amdhsa_kernarg_size 88
  .amdhsa_user_sgpr_count 2
  .amdhsa_user_sgpr_kernarg_segment_ptr 1
  .amdhsa_system_sgpr_workgroup_id_x 1
.end_amdhsa_kernel
"""
open('concat_heads__grouped_kv_mqa__sliding_local_dilated__prompt.s','w').write(out)
```

```python
import struct, math
L=[]
def e(s): L.append("    "+s)
def lab(s): L.append(s+":")
def f32(x): return "0x%08x"%struct.unpack("<I",struct.pack("<f",x))[0]
CS=f32(28**-0.5*math.log2(math.e))
QF=0; KV=0x200000; QKVB=0x300000; OA=0x900000; OB=0xB00000
XP=144; WP=320; XB=128*XP; STG=XB+64*WP

def srd(d,b,size):
    e(f"s_mov_b32 s{d}, s{b}"); e(f"s_and_b32 s{d+1}, s{b+1}, 0xffff")
    e(f"s_mov_b32 s{d+2}, {size}"); e(f"s_mov_b32 s{d+3}, 0x20000")

def gemm_core(NT, kv=False):
    nW = 4 if NT==128 else 2
    ntn = NT//64
    e("v_lshrrev_b32 v12, 3, v0"); e("v_and_b32 v13, 7, v0")
    e("v_mul_u32_u24 v2, 896, v12"); e("v_lshl_add_u32 v2, v13, 4, v2"); e("v_add_u32 v2, s32, v2")
    for i in range(1,4): e(f"v_add_u32 v{2+i}, {28672*i}, v2")
    e(f"v_mul_u32_u24 v10, {XP}, v12"); e("v_lshl_add_u32 v10, v13, 4, v10")
    if not kv:
        sh = 4 if NT==128 else 3
        e(f"v_lshrrev_b32 v12, {sh}, v0"); e(f"v_and_b32 v13, {(1<<sh)-1}, v0")
        e("v_mul_lo_u32 v6, s33, v12"); e("v_lshl_add_u32 v6, v13, 4, v6"); e("v_add_u32 v6, s34, v6")
        rows = 256>>sh
        e(f"s_mul_i32 s35, s33, {rows}")
        for i in range(1,nW): e(f"v_add_u32 v{6+i}, s35, v{5+i}")
        e(f"v_mul_u32_u24 v11, {WP}, v12"); e("v_lshl_add_u32 v11, v13, 4, v11"); e(f"v_add_u32 v11, {XB}, v11")
        wstep = rows*WP
    else:
        for i in range(4):
            e(f"v_add_u32 v12, {256*i}, v0")
            e("v_mul_u32_u24 v13, 4682, v12"); e("v_lshrrev_b32 v13, 16, v13")
            e("v_mul_u32_u24 v14, 14, v13"); e("v_sub_u32 v14, v12, v14")
            e("v_cmp_gt_u32 vcc, 7, v14"); e("v_subrev_u32 v15, 7, v14"); e("s_nop 1")
            e("v_cndmask_b32 v15, v15, v14, vcc")
            e(f"v_mul_u32_u24 v{6+i}, 56, v13"); e(f"v_lshl_add_u32 v{6+i}, v15, 3, v{6+i}")
            e("v_mov_b32 v16, 64"); e("v_cndmask_b32 v16, v16, 0, vcc")
            e(f"v_mul_u32_u24 v{44+i}, {WP}, v13"); e(f"v_lshl_add_u32 v{44+i}, v15, 3, v{44+i}")
            e(f"v_add_u32 v{44+i}, v{44+i}, v16"); e(f"v_add_u32 v{44+i}, {XB}, v{44+i}")
            e(f"v_cndmask_b32 v{48+i}, 0, 1, vcc")
            e("v_cmp_lt_u32 vcc, 63, v13"); e("v_mov_b32 v16, 0x7fffff00"); e("s_nop 0")
            e(f"v_cndmask_b32 v{6+i}, v{6+i}, v16, vcc")
            e(f"v_mov_b32 v16, {XB+63*WP+256}"); e(f"v_cndmask_b32 v{44+i}, v{44+i}, v16, vcc")
    e("v_and_b32 v12, 31, v1"); e("v_lshrrev_b32 v13, 5, v1")
    e("s_lshl_b32 s35, s36, 6"); e("v_add_u32 v12, s35, v12")
    e(f"v_mul_u32_u24 v52, {XP}, v12"); e("v_lshl_add_u32 v52, v13, 4, v52")
    e("v_bfe_u32 v12, v1, 2, 2"); e("v_lshl_add_u32 v12, v13, 3, v12")
    e(f"v_mul_u32_u24 v53, {WP}, v12"); e("v_bfe_u32 v12, v1, 4, 1"); e("v_and_b32 v13, 3, v1")
    e("v_lshlrev_b32 v12, 5, v12"); e("v_lshl_add_u32 v12, v13, 3, v12"); e("v_add_u32 v53, v53, v12")
    e(f"s_mul_i32 s35, s37, {NT}"); e("v_add_u32 v53, s35, v53"); e(f"v_add_u32 v53, {XB}, v53")
    for r in range(32*ntn): e(f"v_mov_b32 v{64+r}, 0")
    def gload(c):
        o=0 if kv else 128*(c%2)
        e(f"s_mov_b32 s38, {c*128}")
        for i in range(4): e(f"buffer_load_dwordx4 v[{o+16+4*i}:{o+19+4*i}], v{2+i}, s[24:27], s38 offen")
        if not kv:
            e(f"s_mul_i32 s38, s33, {c*64}")
            for i in range(nW): e(f"buffer_load_dwordx4 v[{o+32+4*i}:{o+35+4*i}], v{6+i}, s[28:31], s38 offen")
        else:
            e(f"s_mov_b32 s38, {c*64*56}")
            for i in range(4):
                e(f"buffer_load_dwordx2 v[{32+2*i}:{33+2*i}], v{6+i}, s[28:31], s38 offen")
                e(f"buffer_load_dwordx2 v[{40+2*i if i<2 else 0}:{41+2*i if i<2 else 0}], v{6+i}, s[40:43], s38 offen") if False else None
            for i in range(4):
                e(f"buffer_load_dwordx2 v[{56+2*i}:{57+2*i}], v{6+i}, s[40:43], s38 offen")
    def dswrite(b,pend=0):
        o=0 if kv else 128*b
        e(f"s_waitcnt vmcnt({pend})")
        for i in range(4): e(f"ds_write_b128 v10, v[{o+16+4*i}:{o+19+4*i}] offset:{b*STG+i*32*XP}")
        if not kv:
            for i in range(nW): e(f"ds_write_b128 v11, v[{o+32+4*i}:{o+35+4*i}] offset:{b*STG+i*wstep}")
        else:
            for i in range(4):
                e(f"v_cmp_ne_u32 vcc, 0, v{48+i}"); e("s_nop 1")
                e(f"v_cndmask_b32 v{32+2*i}, v{56+2*i}, v{32+2*i}, vcc"); e(f"v_cndmask_b32 v{33+2*i}, v{57+2*i}, v{33+2*i}, vcc")
                e(f"ds_write_b64 v{44+i}, v[{32+2*i}:{33+2*i}] offset:{b*STG}")
        e("s_waitcnt lgkmcnt(0)"); e("s_barrier")
    P=4+nW
    gload(0)
    if kv: dswrite(0)
    else: gload(1); dswrite(0,P)
    for c in range(7):
        b=c%2
        if kv:
            if c<6: gload(c+1)
        elif c<5: gload(c+2)
        for ks in range(4):
            for tm in range(2): e(f"ds_read_b128 v[{128+4*tm}:{131+4*tm}], v52 offset:{b*STG+tm*32*XP+ks*32}")
            for tn in range(ntn):
                for q in range(2):
                    e(f"ds_read_b64_tr_b16 v[{136+4*tn+2*q}:{137+4*tn+2*q}], v53 offset:{b*STG+(ks*16+4*q)*WP+tn*64}")
            e("s_waitcnt lgkmcnt(0)")
            for tn in range(ntn):
                for tm in range(2):
                    a=64+16*(tn*2+tm)
                    e(f"v_mfma_f32_32x32x16_bf16 v[{a}:{a+15}], v[{136+4*tn}:{139+4*tn}], v[{128+4*tm}:{131+4*tm}], v[{a}:{a+15}]")
        if c<6: dswrite(1-b, P if (c<5 and not kv) else 0)
    e("s_nop 15")

def wave_ids():
    e("v_and_b32 v1, 63, v0"); e("v_lshrrev_b32 v2, 6, v0"); e("s_nop 0"); e("v_readfirstlane_b32 s35, v2")
    e("s_and_b32 s36, s35, 1"); e("s_lshr_b32 s37, s35, 1")

def epi_pos_n(NT):
    e("v_and_b32 v2, 31, v1"); e("s_lshl_b32 s35, s36, 6"); e("s_add_u32 s35, s35, s39"); e("v_add_u32 v2, s35, v2")
    e("v_lshrrev_b32 v3, 5, v1"); e("v_lshlrev_b32 v3, 2, v3"); e(f"s_mul_i32 s35, s37, {NT//2}"); e("v_add_u32 v3, s35, v3")

HDR=open('hdr.txt').read()
def k1():
    lab2("k1_kernel")
    e("s_cmp_ge_u32 s2, 256"); e("s_cbranch_scc1 K1_END")
    e("s_load_dwordx8 s[4:11], s[0:1], 0"); e("s_load_dwordx4 s[12:15], s[0:1], 40"); e("s_load_dwordx2 s[16:17], s[0:1], 80")
    e("s_and_b32 s39, s2, 15"); e("s_lshr_b32 s3, s2, 4"); e("s_mul_i32 s32, s39, 114688"); e("s_lshl_b32 s39, s39, 7")
    wave_ids()
    e("s_waitcnt lgkmcnt(0)")
    srd(44,16,0x10000000)
    e("s_cmp_ge_u32 s3, 5"); e("s_cbranch_scc1 K1_B")
    srd(24,4,1835008)
    e("s_cmp_eq_u32 s3, 4"); e("s_cbranch_scc1 K1_KV")
    srd(28,6,401408); e("s_mov_b32 s33, 896"); e("s_lshl_b32 s34, s3, 8")
    gemm_core(128)
    epi_pos_n(128)
    e("s_lshl_b32 s35, s3, 7"); e("v_add_u32 v3, s35, v3"); e(f"s_mov_b32 s38, {CS}"); e("v_mov_b32 v10, 0"); e("v_mov_b32 v11, 0")
    for tn in range(2):
      for g in range(4):
        e(f"v_add_u32 v4, {32*tn+8*g}, v3")
        e("v_mul_u32_u24 v5, 9363, v4"); e("v_lshrrev_b32 v5, 18, v5")
        e("v_mul_u32_u24 v6, 28, v5"); e("v_sub_u32 v6, v4, v6")
        e("v_lshrrev_b32 v7, 2, v5"); e("v_lshlrev_b32 v7, 11, v7"); e("v_lshrrev_b32 v12, 3, v6"); e("v_lshl_add_u32 v7, v12, 9, v7")
        e("v_and_b32 v12, 3, v5"); e("v_lshl_add_u32 v7, v12, 7, v7"); e("v_and_b32 v12, 7, v6"); e("v_lshl_add_u32 v7, v12, 1, v7")
        for tm in range(2):
            a=64+16*(tn*2+tm)+4*g
            e(f"v_add_u32 v13, {32*tm}, v2"); e("v_lshrrev_b32 v14, 3, v13"); e("v_lshlrev_b32 v14, 13, v14"); e("v_and_b32 v13, 7, v13")
            e("v_lshl_add_u32 v14, v13, 4, v14"); e("v_add_u32 v14, v14, v7")
            for i in range(4): e(f"v_mul_f32 v{a+i}, s38, v{a+i}")
            e(f"v_cvt_pk_bf16_f32 v8, v{a}, v{a+1}"); e(f"v_cvt_pk_bf16_f32 v9, v{a+2}, v{a+3}")
            e("v_cmp_gt_u32 vcc, 448, v4"); e("s_and_saveexec_b64 s[48:49], vcc")
            e("v_cmp_eq_u32 vcc, 24, v6"); e("s_and_saveexec_b64 s[50:51], vcc")
            e("buffer_store_dwordx4 v[8:11], v14, s[44:47], 0 offen")
            e("s_andn2_b64 exec, s[50:51], exec")
            e("buffer_store_dwordx2 v[8:9], v14, s[44:47], 0 offen")
            e("s_mov_b64 exec, s[48:49]"); e("s_nop 1")
    e("s_endpgm")
    lab("K1_KV")
    srd(28,8,25088); srd(40,10,25088)
    gemm_core(128, kv=True)
    epi_pos_n(128)
    e("s_cmp_lg_u32 s37, 0"); e("s_cbranch_scc1 K1_END")
    e("v_mov_b32 v10, 0"); e("v_mov_b32 v11, 0"); e("v_mov_b32 v15, 0x3f80"); e("v_mov_b32 v16, 0")
    for tn in range(2):
      for g in range(4):
        e(f"v_add_u32 v6, {8*g}, v3")
        for tm in range(2):
            a=64+16*(tn*2+tm)+4*g
            e(f"v_add_u32 v13, {32*tm}, v2"); e("v_lshrrev_b32 v14, 5, v13"); e("v_lshlrev_b32 v14, 12, v14"); e(f"v_add_u32 v14, {KV}, v14")
            e("v_and_b32 v13, 31, v13")
            e("v_cmp_gt_u32 vcc, 28, v6"); e("s_and_saveexec_b64 s[48:49], vcc")
            if tn==0:
                e("v_lshl_add_u32 v14, v13, 4, v14"); e("v_lshrrev_b32 v12, 3, v6"); e("v_lshl_add_u32 v14, v12, 9, v14")
                e("v_and_b32 v12, 7, v6"); e("v_lshl_add_u32 v14, v12, 1, v14")
                e(f"v_cvt_pk_bf16_f32 v8, v{a}, v{a+1}"); e(f"v_cvt_pk_bf16_f32 v9, v{a+2}, v{a+3}")
                e("v_cmp_eq_u32 vcc, 24, v6"); e("s_and_saveexec_b64 s[50:51], vcc")
                e("buffer_store_dwordx4 v[8:11], v14, s[44:47], 0 offen")
                e("s_andn2_b64 exec, s[50:51], exec")
                e("buffer_store_dwordx2 v[8:9], v14, s[44:47], 0 offen")
            else:
                e("v_lshrrev_b32 v12, 4, v13"); e("v_lshl_add_u32 v14, v12, 10, v14"); e("v_bfe_u32 v12, v13, 2, 1"); e("v_lshl_add_u32 v14, v12, 9, v14")
                e("v_bfe_u32 v12, v13, 3, 1"); e("v_lshl_add_u32 v14, v12, 3, v14"); e("v_and_b32 v12, 3, v13"); e("v_lshl_add_u32 v14, v12, 1, v14")
                e("v_lshl_add_u32 v14, v6, 4, v14"); e("v_add_u32 v14, 2048, v14")
                e(f"v_cvt_pk_bf16_f32 v8, v{a}, v{a+1}"); e(f"v_cvt_pk_bf16_f32 v9, v{a+2}, v{a+3}")
                e("buffer_store_short v8, v14, s[44:47], 0 offen"); e("buffer_store_short_d16_hi v8, v14, s[44:47], 0 offen offset:16")
                e("buffer_store_short v9, v14, s[44:47], 0 offen offset:32"); e("buffer_store_short_d16_hi v9, v14, s[44:47], 0 offen offset:48")
                e("v_cmp_eq_u32 vcc, 24, v6"); e("s_and_saveexec_b64 s[50:51], vcc")
                e("buffer_store_short v15, v14, s[44:47], 0 offen offset:64")
                for o in (80,96,112): e(f"buffer_store_short v16, v14, s[44:47], 0 offen offset:{o}")
            e("s_mov_b64 exec, s[48:49]"); e("s_nop 1")
    e("s_endpgm")
    lab("K1_B")
    srd(24,12,1835008); srd(28,14,1204224); e("s_mov_b32 s33, 2688"); e("s_sub_u32 s3, s3, 5"); e("s_lshl_b32 s34, s3, 8")
    gemm_core(128)
    epi_pos_n(128)
    e("s_lshl_b32 s35, s3, 7"); e("v_add_u32 v3, s35, v3")
    for tn in range(2):
      for g in range(4):
        e(f"v_add_u32 v4, {32*tn+8*g}, v3")
        for tm in range(2):
            a=64+16*(tn*2+tm)+4*g
            e(f"v_add_u32 v13, {32*tm}, v2"); e("v_mul_u32_u24 v14, 2688, v13"); e("v_lshl_add_u32 v14, v4, 1, v14"); e(f"v_add_u32 v14, {QKVB}, v14")
            e(f"v_cvt_pk_bf16_f32 v8, v{a}, v{a+1}"); e(f"v_cvt_pk_bf16_f32 v9, v{a+2}, v{a+3}")
            e("v_cmp_gt_u32 vcc, 1344, v4"); e("s_and_saveexec_b64 s[48:49], vcc")
            e("buffer_store_dwordx2 v[8:9], v14, s[44:47], 0 offen")
            e("s_mov_b64 exec, s[48:49]"); e("s_nop 1")
    lab("K1_END"); e("s_endpgm")

def lab2(n):
    L.append(".p2align 8"); L.append(f".globl {n}"); L.append(f".type {n},@function"); lab(n)

def k2():
    lab2("k2_kernel")
    e("s_cmp_ge_u32 s2, 320"); e("s_cbranch_scc1 K2_END")
    e("s_load_dwordx2 s[16:17], s[0:1], 80"); e("s_waitcnt lgkmcnt(0)"); srd(44,16,0x10000000)
    e("s_cmp_ge_u32 s2, 256"); e("s_cbranch_scc1 K2_B")
    e("v_and_b32 v1, 63, v0"); e("v_lshrrev_b32 v2, 6, v0"); e("s_nop 0"); e("v_readfirstlane_b32 s3, v2")
    e("s_and_b32 s4, s3, 3"); e("s_lshr_b32 s5, s3, 2")
    e("s_lshl_b32 s6, s2, 2"); e("s_add_u32 s6, s6, s4"); e("s_lshl_b32 s6, s6, 11")
    e("v_lshlrev_b32 v2, 4, v1")
    e("buffer_load_dwordx4 v[8:11], v2, s[44:47], s6 offen"); e("buffer_load_dwordx4 v[12:15], v2, s[44:47], s6 offen offset:1024")
    e("s_lshl_b32 s7, s5, 5"); e("s_add_u32 s7, s7, s4"); e("s_lshl_b32 s7, s7, 12"); e(f"s_add_u32 s7, s7, {KV}")
    e("s_lshl_b32 s8, s3, 12")
    e("s_lshl_b32 s9, s5, 14"); e("v_add_u32 v3, s9, v2")
    for r in range(16): e(f"v_mov_b32 v{32+r}, 0"); e(f"v_mov_b32 v{64+r}, 0")
    e("v_mov_b32 v4, 0")
    e("s_mov_b32 s10, 0xff800000"); e("s_mov_b32 s11, 0xff800000")
    def dma():
        e("s_mov_b32 m0, s8"); e("s_nop 0")
        for i in range(4): e(f"buffer_load_dwordx4 v2, s[44:47], s7 offen offset:{i*1024} lds")
        e("s_add_u32 s7, s7, 16384"); e("s_xor_b32 s8, s8, 32768")
    dma(); e("s_mov_b32 s12, 0")
    lab("K2_LOOP")
    e("s_waitcnt vmcnt(0)"); e("s_barrier")
    e("s_cmp_eq_u32 s12, 7"); e("s_cbranch_scc1 K2_NODMA"); dma(); lab("K2_NODMA")
    def rd(tt):
        k=16 if tt%2==0 else 96
        for u in range(2): e(f"ds_read_b128 v[{k+4*u}:{k+3+4*u}], v3 offset:{tt*4096+u*1024}")
        for u in range(2): e(f"ds_read_b128 v[{k+8+4*u}:{k+11+4*u}], v3 offset:{tt*4096+2048+u*1024}")
    def qk(tt):
        k=16 if tt%2==0 else 96; S=48 if tt%2==0 else 80
        e(f"v_mfma_f32_32x32x16_bf16 v[{S}:{S+15}], v[{k}:{k+3}], v[8:11], v[32:47]")
        e(f"v_mfma_f32_32x32x16_bf16 v[{S}:{S+15}], v[{k+4}:{k+7}], v[12:15], v[{S}:{S+15}]")
    rd(0); e("s_waitcnt lgkmcnt(0)"); qk(0); e("s_nop 7")
    for tt in range(4):
        k=16 if tt%2==0 else 96; S=48 if tt%2==0 else 80
        if tt<3: rd(tt+1)
        e("s_nop 7")
        e(f"v_max3_f32 v5, v{S}, v{S+1}, v{S+2}")
        for r in range(S+3,S+15,2): e(f"v_max3_f32 v5, v5, v{r}, v{r+1}")
        e(f"v_max_f32 v5, v5, v{S+15}")
        e("v_cmp_lt_f32 vcc, s10, v5"); e(f"s_cbranch_vccnz K2_SLOW{tt}")
        lab(f"K2_BACK{tt}")
        for r in range(16): e(f"v_exp_f32 v{S+r}, v{S+r}")
        e("s_nop 0")
        for r in range(8): e(f"v_cvt_pk_bf16_f32 v{S+r}, v{S+2*r}, v{S+1+2*r}")
        e("s_waitcnt lgkmcnt(0)"); e("s_nop 1")
        if tt<3: qk(tt+1)
        e(f"v_mfma_f32_32x32x16_bf16 v[64:79], v[{k+8}:{k+11}], v[{S}:{S+3}], v[64:79]")
        e(f"v_mfma_f32_32x32x16_bf16 v[64:79], v[{k+12}:{k+15}], v[{S+4}:{S+7}], v[64:79]")
    e("v_xor_b32 v3, 0x8000, v3")
    e("s_add_u32 s12, s12, 1"); e("s_cmp_lt_u32 s12, 8"); e("s_cbranch_scc1 K2_LOOP")
    e("s_branch K2_FIN")
    for tt in range(4):
        lab(f"K2_SLOW{tt}")
        e("s_nop 7")
        e("v_mov_b32 v6, v5"); e("s_nop 1"); e("v_permlane32_swap_b32 v5, v6"); e("s_nop 1")
        e("v_max_f32 v5, v5, v6"); e("v_max_f32 v5, s11, v5")
        e("v_add_f32 v4, v4, v5"); e("v_sub_f32 v6, 0, v5"); e("v_min_f32 v6, 0x42c80000, v6"); e("v_exp_f32 v6, v6")
        for r in range(16): e(f"v_sub_f32 v{32+r}, v{32+r}, v5"); e(f"v_sub_f32 v{(48,80)[tt%2]+r}, v{(48,80)[tt%2]+r}, v5")
        for r in range(16): e(f"v_mul_f32 v{64+r}, v{64+r}, v6")
        e("s_mov_b32 s10, 0x41000000"); e("s_mov_b32 s11, 0")
        e(f"s_branch K2_BACK{tt}")
    lab("K2_FIN")
    e("s_nop 15"); e("s_barrier")
    e("s_lshl_b32 s9, s4, 13"); e("v_lshlrev_b32 v3, 2, v1"); e("v_add_u32 v3, s9, v3")
    e("s_cmp_eq_u32 s5, 0"); e("s_cbranch_scc1 K2_H0")
    for r in range(16): e(f"ds_write_b32 v3, v{64+r} offset:{r*256}")
    e("ds_write_b32 v3, v4 offset:4096"); e("s_waitcnt lgkmcnt(0)"); e("s_barrier"); e("s_endpgm")
    lab("K2_H0")
    e("s_barrier")
    for r in range(16): e(f"ds_read_b32 v{32+r}, v3 offset:{r*256}")
    e("ds_read_b32 v5, v3 offset:4096"); e("s_waitcnt lgkmcnt(0)")
    e("v_max_f32 v6, v4, v5"); e("v_sub_f32 v4, v4, v6"); e("v_sub_f32 v5, v5, v6"); e("v_exp_f32 v4, v4"); e("v_exp_f32 v5, v5"); e("s_nop 0")
    for r in range(16): e(f"v_mul_f32 v{64+r}, v{64+r}, v4"); e(f"v_fmac_f32 v{64+r}, v{32+r}, v5")
    e("v_mov_b32 v5, v76"); e("v_mov_b32 v6, v76"); e("s_nop 1"); e("v_permlane32_swap_b32 v5, v6"); e("s_nop 1")
    e("v_rcp_f32 v6, v6"); e("s_nop 0")
    for r in range(16): e(f"v_mul_f32 v{64+r}, v{64+r}, v6")
    e("v_and_b32 v5, 7, v1"); e("s_lshl_b32 s9, s2, 3"); e("v_add_u32 v5, s9, v5"); e("v_mul_u32_u24 v5, 896, v5")
    e("v_bfe_u32 v6, v1, 3, 2"); e("s_lshl_b32 s9, s4, 2"); e("v_add_u32 v6, s9, v6"); e("v_mul_u32_u24 v6, 56, v6"); e("v_add_u32 v5, v5, v6")
    e("v_lshrrev_b32 v6, 5, v1"); e("v_lshl_add_u32 v5, v6, 3, v5"); e(f"v_add_u32 v5, {OA}, v5")
    for g in range(4):
        e(f"v_cvt_pk_bf16_f32 v{32+2*g}, v{64+4*g}, v{65+4*g}"); e(f"v_cvt_pk_bf16_f32 v{33+2*g}, v{66+4*g}, v{67+4*g}")
        if g==3: e("v_cmp_gt_u32 vcc, 32, v1"); e("s_and_saveexec_b64 s[48:49], vcc")
        e(f"buffer_store_dwordx2 v[{32+2*g}:{33+2*g}], v5, s[44:47], 0 offen offset:{16*g}")
    e("s_endpgm")
    lab("K2_B")
    e("s_sub_u32 s3, s2, 256"); e("s_lshl_b32 s3, s3, 9"); e("v_add_u32 v1, s3, v0")
    e("v_lshrrev_b32 v2, 4, v1"); e("v_and_b32 v3, 15, v1"); e("v_mul_u32_u24 v3, 56, v3")
    e("v_mul_u32_u24 v4, 2688, v2"); e("v_add_u32 v4, v4, v3"); e(f"v_add_u32 v4, {QKVB}, v4")
    def ld(dst,va,off):
        for i in range(3): e(f"buffer_load_dwordx4 v[{dst+4*i}:{dst+4*i+3}], v{va}, s[44:47], 0 offen offset:{off+16*i}")
        e(f"buffer_load_dwordx2 v[{dst+12}:{dst+13}], v{va}, s[44:47], 0 offen offset:{off+48}")
    def unp(dst,src):
        for i in range(14):
            e(f"v_and_b32 v{dst+2*i+1}, 0xffff0000, v{src+i}"); e(f"v_lshlrev_b32 v{dst+2*i}, 16, v{src+i}")
    ld(16,4,0)
    for w in range(8):
        e(f"v_subrev_u32 v5, {2*w}, v2"); e("v_max_i32 v5, 0, v5")
        e(f"v_mul_u32_u24 v{8+w}, 2688, v5"); e(f"v_add_u32 v{8+w}, v{8+w}, v3"); e(f"v_add_u32 v{8+w}, {QKVB}, v{8+w}")
    for w in range(4): ld(100+16*w,8+w,896)
    e("s_waitcnt vmcnt(16)"); unp(32,16)
    for w in range(8):
        e(f"s_waitcnt vmcnt({12 if w<5 else 4*(7-w)})"); unp(60,100+16*(w%4))
        if w<4: ld(100+16*w,12+w,896)
        e(f"v_mul_f32 v{88+w}, v32, v60")
        for d in range(1,28): e(f"v_fmac_f32 v{88+w}, v{32+d}, v{60+d}")
        e(f"v_cmp_gt_u32 vcc, {2*w}, v2"); e(f"v_mov_b32 v6, 0xce6e6b28"); e(f"v_mul_f32 v{88+w}, {CS}, v{88+w}"); e(f"v_cndmask_b32 v{88+w}, v{88+w}, v6, vcc")
    for w in range(4): ld(100+16*w,8+w,1792)
    e("v_max3_f32 v5, v88, v89, v90"); e("v_max3_f32 v5, v5, v91, v92"); e("v_max3_f32 v5, v5, v93, v94"); e("v_max_f32 v5, v5, v95")
    for w in range(8): e(f"v_sub_f32 v{88+w}, v{88+w}, v5"); e(f"v_exp_f32 v{88+w}, v{88+w}")
    e("s_nop 0"); e("v_add_f32 v5, v88, v89")
    for w in range(2,8): e(f"v_add_f32 v5, v5, v{88+w}")
    e("v_rcp_f32 v5, v5")
    for w in range(8):
        e(f"s_waitcnt vmcnt({12 if w<5 else 4*(7-w)})"); unp(60,100+16*(w%4))
        if w<4: ld(100+16*w,12+w,1792)
        for d in range(28):
            e(f"v_mul_f32 v{32+d}, v{88}, v{60+d}" if w==0 else f"v_fmac_f32 v{32+d}, v{88+w}, v{60+d}")
    for d in range(28): e(f"v_mul_f32 v{32+d}, v5, v{32+d}")
    for i in range(14): e(f"v_cvt_pk_bf16_f32 v{16+i}, v{32+2*i}, v{33+2*i}")
    e("v_mul_u32_u24 v4, 896, v2"); e("v_add_u32 v4, v4, v3"); e(f"v_add_u32 v4, {OB}, v4")
    for i in range(3): e(f"buffer_store_dwordx4 v[{16+4*i}:{19+4*i}], v4, s[44:47], 0 offen offset:{16*i}")
    e("buffer_store_dwordx2 v[28:29], v4, s[44:47], 0 offen offset:48")
    lab("K2_END"); e("s_endpgm")

def k3():
    lab2("k3_kernel")
    e("s_cmp_ge_u32 s2, 224"); e("s_cbranch_scc1 K3_END")
    e("s_load_dwordx2 s[4:5], s[0:1], 32"); e("s_load_dwordx4 s[8:11], s[0:1], 56"); e("s_load_dwordx2 s[16:17], s[0:1], 80")
    e("s_and_b32 s39, s2, 15"); e("s_lshr_b32 s3, s2, 4"); e("s_mul_i32 s32, s39, 114688"); e("s_lshl_b32 s39, s39, 7")
    wave_ids(); e("s_waitcnt lgkmcnt(0)")
    srd(24,16,0x10000000); srd(44,10,3670016)
    e("s_cmp_ge_u32 s3, 7"); e("s_cselect_b32 s6, s8, s4"); e("s_cselect_b32 s7, s9, s5")
    e(f"s_cselect_b32 s35, {OB-OA}, 0"); e("s_cselect_b32 s41, 7, 0"); e("s_cselect_b32 s40, 896, 0")
    e("s_add_u32 s32, s32, s35"); e(f"s_add_u32 s32, s32, {OA}"); e("s_sub_u32 s3, s3, s41")
    srd(28,6,401408); e("s_mov_b32 s33, 896"); e("s_lshl_b32 s34, s3, 7")
    gemm_core(64)
    epi_pos_n(64)
    e("s_lshl_b32 s35, s3, 6"); e("v_add_u32 v3, s35, v3")
    for g in range(4):
        e(f"v_add_u32 v4, {8*g}, v3")
        for tm in range(2):
            a=64+16*tm+4*g
            e(f"v_add_u32 v13, {32*tm}, v2"); e("v_mul_u32_u24 v14, 1792, v13"); e("v_lshl_add_u32 v14, v4, 1, v14"); e("v_add_u32 v14, s40, v14")
            e(f"v_cvt_pk_bf16_f32 v8, v{a}, v{a+1}"); e(f"v_cvt_pk_bf16_f32 v9, v{a+2}, v{a+3}")
            e("buffer_store_dwordx2 v[8:9], v14, s[44:47], 0 offen"); e("s_nop 1")
    lab("K3_END"); e("s_endpgm")

k1(); k2(); k3()
out=HDR+"\n".join(L)+"\n.section .rodata,\"a\"\n"
for n,v in (("k1_kernel",176),("k2_kernel",168),("k3_kernel",176)):
    out+=f""".p2align 6
.amdhsa_kernel {n}
  .amdhsa_next_free_vgpr {v}
  .amdhsa_next_free_sgpr 64
  .amdhsa_accum_offset {v}
  .amdhsa_group_segment_fixed_size 0
  .amdhsa_kernarg_size 88
  .amdhsa_user_sgpr_count 2
  .amdhsa_user_sgpr_kernarg_segment_ptr 1
  .amdhsa_system_sgpr_workgroup_id_x 1
.end_amdhsa_kernel
"""
open('concat_heads__grouped_kv_mqa__sliding_local_dilated__prompt.s','w').write(out)
```

```python
import struct, math
L=[]
def e(s): L.append("    "+s)
def lab(s): L.append(s+":")
def f32(x): return "0x%08x"%struct.unpack("<I",struct.pack("<f",x))[0]
CS=f32(28**-0.5*math.log2(math.e))
QF=0; KV=0x200000; QKVB=0x300000; OA=0x900000; OB=0xB00000
XP=144; WP=320; XB=128*XP; STG=XB+64*WP

def srd(d,b,size):
    e(f"s_mov_b32 s{d}, s{b}"); e(f"s_and_b32 s{d+1}, s{b+1}, 0xffff")
    e(f"s_mov_b32 s{d+2}, {size}"); e(f"s_mov_b32 s{d+3}, 0x20000")

def gemm_core(NT, kv=False):
    nW = 4 if NT==128 else 2
    ntn = NT//64
    e("v_lshrrev_b32 v12, 3, v0"); e("v_and_b32 v13, 7, v0")
    e("v_mul_u32_u24 v2, 896, v12"); e("v_lshl_add_u32 v2, v13, 4, v2"); e("v_add_u32 v2, s32, v2")
    for i in range(1,4): e(f"v_add_u32 v{2+i}, {28672*i}, v2")
    e(f"v_mul_u32_u24 v10, {XP}, v12"); e("v_lshl_add_u32 v10, v13, 4, v10")
    if not kv:
        sh = 4 if NT==128 else 3
        e(f"v_lshrrev_b32 v12, {sh}, v0"); e(f"v_and_b32 v13, {(1<<sh)-1}, v0")
        e("v_mul_lo_u32 v6, s33, v12"); e("v_lshl_add_u32 v6, v13, 4, v6"); e("v_add_u32 v6, s34, v6")
        rows = 256>>sh
        e(f"s_mul_i32 s35, s33, {rows}")
        for i in range(1,nW): e(f"v_add_u32 v{6+i}, s35, v{5+i}")
        e(f"v_mul_u32_u24 v11, {WP}, v12"); e("v_lshl_add_u32 v11, v13, 4, v11"); e(f"v_add_u32 v11, {XB}, v11")
        wstep = rows*WP
    else:
        for i in range(4):
            e(f"v_add_u32 v12, {256*i}, v0")
            e("v_mul_u32_u24 v13, 4682, v12"); e("v_lshrrev_b32 v13, 16, v13")
            e("v_mul_u32_u24 v14, 14, v13"); e("v_sub_u32 v14, v12, v14")
            e("v_cmp_gt_u32 vcc, 7, v14"); e("v_subrev_u32 v15, 7, v14"); e("s_nop 1")
            e("v_cndmask_b32 v15, v15, v14, vcc")
            e(f"v_mul_u32_u24 v{6+i}, 56, v13"); e(f"v_lshl_add_u32 v{6+i}, v15, 3, v{6+i}")
            e("v_mov_b32 v16, 64"); e("v_cndmask_b32 v16, v16, 0, vcc")
            e(f"v_mul_u32_u24 v{44+i}, {WP}, v13"); e(f"v_lshl_add_u32 v{44+i}, v15, 3, v{44+i}")
            e(f"v_add_u32 v{44+i}, v{44+i}, v16"); e(f"v_add_u32 v{44+i}, {XB}, v{44+i}")
            e(f"v_cndmask_b32 v{48+i}, 0, 1, vcc")
            e("v_cmp_lt_u32 vcc, 63, v13"); e("v_mov_b32 v16, 0x7fffff00"); e("s_nop 0")
            e(f"v_cndmask_b32 v{6+i}, v{6+i}, v16, vcc")
            e(f"v_mov_b32 v16, {XB+63*WP+256}"); e(f"v_cndmask_b32 v{44+i}, v{44+i}, v16, vcc")
    e("v_and_b32 v12, 31, v1"); e("v_lshrrev_b32 v13, 5, v1")
    e("s_lshl_b32 s35, s36, 6"); e("v_add_u32 v12, s35, v12")
    e(f"v_mul_u32_u24 v52, {XP}, v12"); e("v_lshl_add_u32 v52, v13, 4, v52")
    e("v_bfe_u32 v12, v1, 2, 2"); e("v_lshl_add_u32 v12, v13, 3, v12")
    e(f"v_mul_u32_u24 v53, {WP}, v12"); e("v_bfe_u32 v12, v1, 4, 1"); e("v_and_b32 v13, 3, v1")
    e("v_lshlrev_b32 v12, 5, v12"); e("v_lshl_add_u32 v12, v13, 3, v12"); e("v_add_u32 v53, v53, v12")
    e(f"s_mul_i32 s35, s37, {NT}"); e("v_add_u32 v53, s35, v53"); e(f"v_add_u32 v53, {XB}, v53")
    for r in range(32*ntn): e(f"v_mov_b32 v{64+r}, 0")
    def gload(c):
        o=0 if kv else 128*(c%2)
        e(f"s_mov_b32 s38, {c*128}")
        for i in range(4): e(f"buffer_load_dwordx4 v[{o+16+4*i}:{o+19+4*i}], v{2+i}, s[24:27], s38 offen")
        if not kv:
            e(f"s_mul_i32 s38, s33, {c*64}")
            for i in range(nW): e(f"buffer_load_dwordx4 v[{o+32+4*i}:{o+35+4*i}], v{6+i}, s[28:31], s38 offen")
        else:
            e(f"s_mov_b32 s38, {c*64*56}")
            for i in range(4):
                e(f"buffer_load_dwordx2 v[{32+2*i}:{33+2*i}], v{6+i}, s[28:31], s38 offen")
                e(f"buffer_load_dwordx2 v[{40+2*i if i<2 else 0}:{41+2*i if i<2 else 0}], v{6+i}, s[40:43], s38 offen") if False else None
            for i in range(4):
                e(f"buffer_load_dwordx2 v[{56+2*i}:{57+2*i}], v{6+i}, s[40:43], s38 offen")
    def dswrite(b,pend=0):
        o=0 if kv else 128*b
        e(f"s_waitcnt vmcnt({pend})")
        for i in range(4): e(f"ds_write_b128 v10, v[{o+16+4*i}:{o+19+4*i}] offset:{b*STG+i*32*XP}")
        if not kv:
            for i in range(nW): e(f"ds_write_b128 v11, v[{o+32+4*i}:{o+35+4*i}] offset:{b*STG+i*wstep}")
        else:
            for i in range(4):
                e(f"v_cmp_ne_u32 vcc, 0, v{48+i}"); e("s_nop 1")
                e(f"v_cndmask_b32 v{32+2*i}, v{56+2*i}, v{32+2*i}, vcc"); e(f"v_cndmask_b32 v{33+2*i}, v{57+2*i}, v{33+2*i}, vcc")
                e(f"ds_write_b64 v{44+i}, v[{32+2*i}:{33+2*i}] offset:{b*STG}")
        e("s_waitcnt lgkmcnt(0)"); e("s_barrier")
    P=4+nW
    gload(0)
    if kv: dswrite(0)
    else: gload(1); dswrite(0,P)
    for c in range(7):
        b=c%2
        if kv:
            if c<6: gload(c+1)
        elif c<5: gload(c+2)
        for ks in range(4):
            for tm in range(2): e(f"ds_read_b128 v[{128+4*tm}:{131+4*tm}], v52 offset:{b*STG+tm*32*XP+ks*32}")
            for tn in range(ntn):
                for q in range(2):
                    e(f"ds_read_b64_tr_b16 v[{136+4*tn+2*q}:{137+4*tn+2*q}], v53 offset:{b*STG+(ks*16+4*q)*WP+tn*64}")
            e("s_waitcnt lgkmcnt(0)")
            for tn in range(ntn):
                for tm in range(2):
                    a=64+16*(tn*2+tm)
                    e(f"v_mfma_f32_32x32x16_bf16 v[{a}:{a+15}], v[{136+4*tn}:{139+4*tn}], v[{128+4*tm}:{131+4*tm}], v[{a}:{a+15}]")
        if c<6: dswrite(1-b, P if (c<5 and not kv) else 0)
    e("s_nop 15")

def wave_ids():
    e("v_and_b32 v1, 63, v0"); e("v_lshrrev_b32 v2, 6, v0"); e("s_nop 0"); e("v_readfirstlane_b32 s35, v2")
    e("s_and_b32 s36, s35, 1"); e("s_lshr_b32 s37, s35, 1")

def epi_pos_n(NT):
    e("v_and_b32 v2, 31, v1"); e("s_lshl_b32 s35, s36, 6"); e("s_add_u32 s35, s35, s39"); e("v_add_u32 v2, s35, v2")
    e("v_lshrrev_b32 v3, 5, v1"); e("v_lshlrev_b32 v3, 2, v3"); e(f"s_mul_i32 s35, s37, {NT//2}"); e("v_add_u32 v3, s35, v3")

HDR=open('hdr.txt').read()
def k1():
    lab2("k1_kernel")
    e("s_cmp_ge_u32 s2, 256"); e("s_cbranch_scc1 K1_END")
    e("s_load_dwordx8 s[4:11], s[0:1], 0"); e("s_load_dwordx4 s[12:15], s[0:1], 40"); e("s_load_dwordx2 s[16:17], s[0:1], 80")
    e("s_and_b32 s39, s2, 15"); e("s_lshr_b32 s3, s2, 4"); e("s_mul_i32 s32, s39, 114688"); e("s_lshl_b32 s39, s39, 7")
    wave_ids()
    e("s_waitcnt lgkmcnt(0)")
    srd(44,16,0x10000000)
    e("s_cmp_ge_u32 s3, 5"); e("s_cbranch_scc1 K1_B")
    srd(24,4,1835008)
    e("s_cmp_eq_u32 s3, 4"); e("s_cbranch_scc1 K1_KV")
    srd(28,6,401408); e("s_mov_b32 s33, 896"); e("s_lshl_b32 s34, s3, 8")
    gemm_core(128)
    epi_pos_n(128)
    e("s_lshl_b32 s35, s3, 7"); e("v_add_u32 v3, s35, v3"); e(f"s_mov_b32 s38, {CS}"); e("v_mov_b32 v10, 0"); e("v_mov_b32 v11, 0")
    for tn in range(2):
      for g in range(4):
        e(f"v_add_u32 v4, {32*tn+8*g}, v3")
        e("v_mul_u32_u24 v5, 9363, v4"); e("v_lshrrev_b32 v5, 18, v5")
        e("v_mul_u32_u24 v6, 28, v5"); e("v_sub_u32 v6, v4, v6")
        e("v_lshrrev_b32 v7, 2, v5"); e("v_lshlrev_b32 v7, 11, v7"); e("v_lshrrev_b32 v12, 3, v6"); e("v_lshl_add_u32 v7, v12, 9, v7")
        e("v_and_b32 v12, 3, v5"); e("v_lshl_add_u32 v7, v12, 7, v7"); e("v_and_b32 v12, 7, v6"); e("v_lshl_add_u32 v7, v12, 1, v7")
        for tm in range(2):
            a=64+16*(tn*2+tm)+4*g
            e(f"v_add_u32 v13, {32*tm}, v2"); e("v_lshrrev_b32 v14, 3, v13"); e("v_lshlrev_b32 v14, 13, v14"); e("v_and_b32 v13, 7, v13")
            e("v_lshl_add_u32 v14, v13, 4, v14"); e("v_add_u32 v14, v14, v7")
            for i in range(4): e(f"v_mul_f32 v{a+i}, s38, v{a+i}")
            e(f"v_cvt_pk_bf16_f32 v8, v{a}, v{a+1}"); e(f"v_cvt_pk_bf16_f32 v9, v{a+2}, v{a+3}")
            e("v_cmp_gt_u32 vcc, 448, v4"); e("s_and_saveexec_b64 s[48:49], vcc")
            e("v_cmp_eq_u32 vcc, 24, v6"); e("s_and_saveexec_b64 s[50:51], vcc")
            e("buffer_store_dwordx4 v[8:11], v14, s[44:47], 0 offen")
            e("s_andn2_b64 exec, s[50:51], exec")
            e("buffer_store_dwordx2 v[8:9], v14, s[44:47], 0 offen")
            e("s_mov_b64 exec, s[48:49]"); e("s_nop 1")
    e("s_endpgm")
    lab("K1_KV")
    srd(28,8,25088); srd(40,10,25088)
    gemm_core(128, kv=True)
    epi_pos_n(128)
    e("s_cmp_lg_u32 s37, 0"); e("s_cbranch_scc1 K1_END")
    e("v_mov_b32 v10, 0"); e("v_mov_b32 v11, 0"); e("v_mov_b32 v15, 0x3f80"); e("v_mov_b32 v16, 0")
    for tn in range(2):
      for g in range(4):
        e(f"v_add_u32 v6, {8*g}, v3")
        for tm in range(2):
            a=64+16*(tn*2+tm)+4*g
            e(f"v_add_u32 v13, {32*tm}, v2"); e("v_lshrrev_b32 v14, 5, v13"); e("v_lshlrev_b32 v14, 12, v14"); e(f"v_add_u32 v14, {KV}, v14")
            e("v_and_b32 v13, 31, v13")
            e("v_cmp_gt_u32 vcc, 28, v6"); e("s_and_saveexec_b64 s[48:49], vcc")
            if tn==0:
                e("v_lshl_add_u32 v14, v13, 4, v14"); e("v_lshrrev_b32 v12, 3, v6"); e("v_lshl_add_u32 v14, v12, 9, v14")
                e("v_and_b32 v12, 7, v6"); e("v_lshl_add_u32 v14, v12, 1, v14")
                e(f"v_cvt_pk_bf16_f32 v8, v{a}, v{a+1}"); e(f"v_cvt_pk_bf16_f32 v9, v{a+2}, v{a+3}")
                e("v_cmp_eq_u32 vcc, 24, v6"); e("s_and_saveexec_b64 s[50:51], vcc")
                e("buffer_store_dwordx4 v[8:11], v14, s[44:47], 0 offen")
                e("s_andn2_b64 exec, s[50:51], exec")
                e("buffer_store_dwordx2 v[8:9], v14, s[44:47], 0 offen")
            else:
                e("v_lshrrev_b32 v12, 4, v13"); e("v_lshl_add_u32 v14, v12, 10, v14"); e("v_bfe_u32 v12, v13, 2, 1"); e("v_lshl_add_u32 v14, v12, 9, v14")
                e("v_bfe_u32 v12, v13, 3, 1"); e("v_lshl_add_u32 v14, v12, 3, v14"); e("v_and_b32 v12, 3, v13"); e("v_lshl_add_u32 v14, v12, 1, v14")
                e("v_lshl_add_u32 v14, v6, 4, v14"); e("v_add_u32 v14, 2048, v14")
                e(f"v_cvt_pk_bf16_f32 v8, v{a}, v{a+1}"); e(f"v_cvt_pk_bf16_f32 v9, v{a+2}, v{a+3}")
                e("buffer_store_short v8, v14, s[44:47], 0 offen"); e("buffer_store_short_d16_hi v8, v14, s[44:47], 0 offen offset:16")
                e("buffer_store_short v9, v14, s[44:47], 0 offen offset:32"); e("buffer_store_short_d16_hi v9, v14, s[44:47], 0 offen offset:48")
                e("v_cmp_eq_u32 vcc, 24, v6"); e("s_and_saveexec_b64 s[50:51], vcc")
                e("buffer_store_short v15, v14, s[44:47], 0 offen offset:64")
                for o in (80,96,112): e(f"buffer_store_short v16, v14, s[44:47], 0 offen offset:{o}")
            e("s_mov_b64 exec, s[48:49]"); e("s_nop 1")
    e("s_endpgm")
    lab("K1_B")
    srd(24,12,1835008); srd(28,14,1204224); e("s_mov_b32 s33, 2688"); e("s_sub_u32 s3, s3, 5"); e("s_lshl_b32 s34, s3, 8")
    gemm_core(128)
    epi_pos_n(128)
    e("s_lshl_b32 s35, s3, 7"); e("v_add_u32 v3, s35, v3")
    for tn in range(2):
      for g in range(4):
        e(f"v_add_u32 v4, {32*tn+8*g}, v3")
        for tm in range(2):
            a=64+16*(tn*2+tm)+4*g
            e(f"v_add_u32 v13, {32*tm}, v2"); e("v_mul_u32_u24 v14, 2688, v13"); e("v_lshl_add_u32 v14, v4, 1, v14"); e(f"v_add_u32 v14, {QKVB}, v14")
            e(f"v_cvt_pk_bf16_f32 v8, v{a}, v{a+1}"); e(f"v_cvt_pk_bf16_f32 v9, v{a+2}, v{a+3}")
            e("v_cmp_gt_u32 vcc, 1344, v4"); e("s_and_saveexec_b64 s[48:49], vcc")
            e("buffer_store_dwordx2 v[8:9], v14, s[44:47], 0 offen")
            e("s_mov_b64 exec, s[48:49]"); e("s_nop 1")
    lab("K1_END"); e("s_endpgm")

def lab2(n):
    L.append(".p2align 8"); L.append(f".globl {n}"); L.append(f".type {n},@function"); lab(n)

def k2():
    lab2("k2_kernel")
    e("s_cmp_ge_u32 s2, 320"); e("s_cbranch_scc1 K2_END")
    e("s_load_dwordx2 s[16:17], s[0:1], 80"); e("s_waitcnt lgkmcnt(0)"); srd(44,16,0x10000000)
    e("s_cmp_ge_u32 s2, 256"); e("s_cbranch_scc1 K2_B")
    e("v_and_b32 v1, 63, v0"); e("v_lshrrev_b32 v2, 6, v0"); e("s_nop 0"); e("v_readfirstlane_b32 s3, v2")
    e("s_and_b32 s4, s3, 3"); e("s_lshr_b32 s5, s3, 2")
    e("s_lshl_b32 s6, s2, 2"); e("s_add_u32 s6, s6, s4"); e("s_lshl_b32 s6, s6, 11")
    e("v_lshlrev_b32 v2, 4, v1")
    e("buffer_load_dwordx4 v[8:11], v2, s[44:47], s6 offen"); e("buffer_load_dwordx4 v[12:15], v2, s[44:47], s6 offen offset:1024")
    e("s_lshl_b32 s7, s5, 5"); e("s_add_u32 s7, s7, s4"); e("s_lshl_b32 s7, s7, 12"); e(f"s_add_u32 s7, s7, {KV}")
    e("s_lshl_b32 s8, s3, 12")
    e("s_lshl_b32 s9, s5, 14"); e("v_add_u32 v3, s9, v2")
    for r in range(16): e(f"v_mov_b32 v{32+r}, 0"); e(f"v_mov_b32 v{64+r}, 0")
    e("v_mov_b32 v4, 0")
    e("s_mov_b32 s10, 0xff800000"); e("s_mov_b32 s11, 0xff800000")
    def dma():
        e("s_mov_b32 m0, s8"); e("s_nop 0")
        e("s_lshl_b32 s14, s13, 14"); e("s_add_u32 s14, s14, s7")
        for i in range(4): e(f"buffer_load_dwordx4 v2, s[44:47], s14 offen offset:{i*1024} lds")
        e("s_add_u32 s13, s13, 1"); e("s_and_b32 s13, s13, 7"); e("s_xor_b32 s8, s8, 32768")
    e("s_lshr_b32 s13, s2, 3"); e("s_and_b32 s13, s13, 7")
    dma(); e("s_mov_b32 s12, 0")
    lab("K2_LOOP")
    e("s_waitcnt vmcnt(0)"); e("s_barrier")
    e("s_cmp_eq_u32 s12, 7"); e("s_cbranch_scc1 K2_NODMA"); dma(); lab("K2_NODMA")
    def rd(tt):
        k=16 if tt%2==0 else 96
        for u in range(2): e(f"ds_read_b128 v[{k+4*u}:{k+3+4*u}], v3 offset:{tt*4096+u*1024}")
        for u in range(2): e(f"ds_read_b128 v[{k+8+4*u}:{k+11+4*u}], v3 offset:{tt*4096+2048+u*1024}")
    def qk(tt):
        k=16 if tt%2==0 else 96; S=48 if tt%2==0 else 80
        e(f"v_mfma_f32_32x32x16_bf16 v[{S}:{S+15}], v[{k}:{k+3}], v[8:11], v[32:47]")
        e(f"v_mfma_f32_32x32x16_bf16 v[{S}:{S+15}], v[{k+4}:{k+7}], v[12:15], v[{S}:{S+15}]")
    rd(0); e("s_waitcnt lgkmcnt(0)"); qk(0); e("s_nop 7")
    for tt in range(4):
        k=16 if tt%2==0 else 96; S=48 if tt%2==0 else 80
        if tt<3: rd(tt+1)
        e("s_nop 7")
        e(f"v_max3_f32 v5, v{S}, v{S+1}, v{S+2}")
        for r in range(S+3,S+15,2): e(f"v_max3_f32 v5, v5, v{r}, v{r+1}")
        e(f"v_max_f32 v5, v5, v{S+15}")
        e("v_cmp_lt_f32 vcc, s10, v5"); e(f"s_cbranch_vccnz K2_SLOW{tt}")
        lab(f"K2_BACK{tt}")
        for r in range(16): e(f"v_exp_f32 v{S+r}, v{S+r}")
        e("s_nop 0")
        for r in range(8): e(f"v_cvt_pk_bf16_f32 v{S+r}, v{S+2*r}, v{S+1+2*r}")
        e("s_waitcnt lgkmcnt(0)"); e("s_nop 1")
        if tt<3: qk(tt+1)
        e(f"v_mfma_f32_32x32x16_bf16 v[64:79], v[{k+8}:{k+11}], v[{S}:{S+3}], v[64:79]")
        e(f"v_mfma_f32_32x32x16_bf16 v[64:79], v[{k+12}:{k+15}], v[{S+4}:{S+7}], v[64:79]")
    e("v_xor_b32 v3, 0x8000, v3")
    e("s_add_u32 s12, s12, 1"); e("s_cmp_lt_u32 s12, 8"); e("s_cbranch_scc1 K2_LOOP")
    e("s_branch K2_FIN")
    for tt in range(4):
        lab(f"K2_SLOW{tt}")
        e("s_nop 7")
        e("v_mov_b32 v6, v5"); e("s_nop 1"); e("v_permlane32_swap_b32 v5, v6"); e("s_nop 1")
        e("v_max_f32 v5, v5, v6"); e("v_max_f32 v5, s11, v5")
        e("v_add_f32 v4, v4, v5"); e("v_sub_f32 v6, 0, v5"); e("v_min_f32 v6, 0x42c80000, v6"); e("v_exp_f32 v6, v6")
        for r in range(16): e(f"v_sub_f32 v{32+r}, v{32+r}, v5"); e(f"v_sub_f32 v{(48,80)[tt%2]+r}, v{(48,80)[tt%2]+r}, v5")
        for r in range(16): e(f"v_mul_f32 v{64+r}, v{64+r}, v6")
        e("s_mov_b32 s10, 0x41000000"); e("s_mov_b32 s11, 0")
        e(f"s_branch K2_BACK{tt}")
    lab("K2_FIN")
    e("s_nop 15"); e("s_barrier")
    e("s_lshl_b32 s9, s4, 13"); e("v_lshlrev_b32 v3, 2, v1"); e("v_add_u32 v3, s9, v3")
    e("s_cmp_eq_u32 s5, 0"); e("s_cbranch_scc1 K2_H0")
    for r in range(16): e(f"ds_write_b32 v3, v{64+r} offset:{r*256}")
    e("ds_write_b32 v3, v4 offset:4096"); e("s_waitcnt lgkmcnt(0)"); e("s_barrier"); e("s_endpgm")
    lab("K2_H0")
    e("s_barrier")
    for r in range(16): e(f"ds_read_b32 v{32+r}, v3 offset:{r*256}")
    e("ds_read_b32 v5, v3 offset:4096"); e("s_waitcnt lgkmcnt(0)")
    e("v_max_f32 v6, v4, v5"); e("v_sub_f32 v4, v4, v6"); e("v_sub_f32 v5, v5, v6"); e("v_exp_f32 v4, v4"); e("v_exp_f32 v5, v5"); e("s_nop 0")
    for r in range(16): e(f"v_mul_f32 v{64+r}, v{64+r}, v4"); e(f"v_fmac_f32 v{64+r}, v{32+r}, v5")
    e("v_mov_b32 v5, v76"); e("v_mov_b32 v6, v76"); e("s_nop 1"); e("v_permlane32_swap_b32 v5, v6"); e("s_nop 1")
    e("v_rcp_f32 v6, v6"); e("s_nop 0")
    for r in range(16): e(f"v_mul_f32 v{64+r}, v{64+r}, v6")
    e("v_and_b32 v5, 7, v1"); e("s_lshl_b32 s9, s2, 3"); e("v_add_u32 v5, s9, v5"); e("v_mul_u32_u24 v5, 896, v5")
    e("v_bfe_u32 v6, v1, 3, 2"); e("s_lshl_b32 s9, s4, 2"); e("v_add_u32 v6, s9, v6"); e("v_mul_u32_u24 v6, 56, v6"); e("v_add_u32 v5, v5, v6")
    e("v_lshrrev_b32 v6, 5, v1"); e("v_lshl_add_u32 v5, v6, 3, v5"); e(f"v_add_u32 v5, {OA}, v5")
    for g in range(4):
        e(f"v_cvt_pk_bf16_f32 v{32+2*g}, v{64+4*g}, v{65+4*g}"); e(f"v_cvt_pk_bf16_f32 v{33+2*g}, v{66+4*g}, v{67+4*g}")
        if g==3: e("v_cmp_gt_u32 vcc, 32, v1"); e("s_and_saveexec_b64 s[48:49], vcc")
        e(f"buffer_store_dwordx2 v[{32+2*g}:{33+2*g}], v5, s[44:47], 0 offen offset:{16*g}")
    e("s_endpgm")
    lab("K2_B")
    e("s_sub_u32 s3, s2, 256"); e("s_lshl_b32 s3, s3, 9"); e("v_add_u32 v1, s3, v0")
    e("v_lshrrev_b32 v2, 4, v1"); e("v_and_b32 v3, 15, v1"); e("v_mul_u32_u24 v3, 56, v3")
    e("v_mul_u32_u24 v4, 2688, v2"); e("v_add_u32 v4, v4, v3"); e(f"v_add_u32 v4, {QKVB}, v4")
    def ld(dst,va,off):
        for i in range(3): e(f"buffer_load_dwordx4 v[{dst+4*i}:{dst+4*i+3}], v{va}, s[44:47], 0 offen offset:{off+16*i}")
        e(f"buffer_load_dwordx2 v[{dst+12}:{dst+13}], v{va}, s[44:47], 0 offen offset:{off+48}")
    def unp(dst,src):
        for i in range(14):
            e(f"v_and_b32 v{dst+2*i+1}, 0xffff0000, v{src+i}"); e(f"v_lshlrev_b32 v{dst+2*i}, 16, v{src+i}")
    ld(16,4,0)
    for w in range(8):
        e(f"v_subrev_u32 v5, {2*w}, v2"); e("v_max_i32 v5, 0, v5")
        e(f"v_mul_u32_u24 v{8+w}, 2688, v5"); e(f"v_add_u32 v{8+w}, v{8+w}, v3"); e(f"v_add_u32 v{8+w}, {QKVB}, v{8+w}")
    for w in range(4): ld(100+16*w,8+w,896)
    e("s_waitcnt vmcnt(16)"); unp(32,16)
    for w in range(8):
        e(f"s_waitcnt vmcnt({12 if w<5 else 4*(7-w)})"); unp(60,100+16*(w%4))
        if w<4: ld(100+16*w,12+w,896)
        e(f"v_mul_f32 v{88+w}, v32, v60")
        for d in range(1,28): e(f"v_fmac_f32 v{88+w}, v{32+d}, v{60+d}")
        e(f"v_cmp_gt_u32 vcc, {2*w}, v2"); e(f"v_mov_b32 v6, 0xce6e6b28"); e(f"v_mul_f32 v{88+w}, {CS}, v{88+w}"); e(f"v_cndmask_b32 v{88+w}, v{88+w}, v6, vcc")
    for w in range(4): ld(100+16*w,8+w,1792)
    e("v_max3_f32 v5, v88, v89, v90"); e("v_max3_f32 v5, v5, v91, v92"); e("v_max3_f32 v5, v5, v93, v94"); e("v_max_f32 v5, v5, v95")
    for w in range(8): e(f"v_sub_f32 v{88+w}, v{88+w}, v5"); e(f"v_exp_f32 v{88+w}, v{88+w}")
    e("s_nop 0"); e("v_add_f32 v5, v88, v89")
    for w in range(2,8): e(f"v_add_f32 v5, v5, v{88+w}")
    e("v_rcp_f32 v5, v5")
    for w in range(8):
        e(f"s_waitcnt vmcnt({12 if w<5 else 4*(7-w)})"); unp(60,100+16*(w%4))
        if w<4: ld(100+16*w,12+w,1792)
        for d in range(28):
            e(f"v_mul_f32 v{32+d}, v{88}, v{60+d}" if w==0 else f"v_fmac_f32 v{32+d}, v{88+w}, v{60+d}")
    for d in range(28): e(f"v_mul_f32 v{32+d}, v5, v{32+d}")
    for i in range(14): e(f"v_cvt_pk_bf16_f32 v{16+i}, v{32+2*i}, v{33+2*i}")
    e("v_mul_u32_u24 v4, 896, v2"); e("v_add_u32 v4, v4, v3"); e(f"v_add_u32 v4, {OB}, v4")
    for i in range(3): e(f"buffer_store_dwordx4 v[{16+4*i}:{19+4*i}], v4, s[44:47], 0 offen offset:{16*i}")
    e("buffer_store_dwordx2 v[28:29], v4, s[44:47], 0 offen offset:48")
    lab("K2_END"); e("s_endpgm")

def k3():
    lab2("k3_kernel")
    e("s_cmp_ge_u32 s2, 224"); e("s_cbranch_scc1 K3_END")
    e("s_load_dwordx2 s[4:5], s[0:1], 32"); e("s_load_dwordx4 s[8:11], s[0:1], 56"); e("s_load_dwordx2 s[16:17], s[0:1], 80")
    e("s_and_b32 s39, s2, 15"); e("s_lshr_b32 s3, s2, 4"); e("s_mul_i32 s32, s39, 114688"); e("s_lshl_b32 s39, s39, 7")
    wave_ids(); e("s_waitcnt lgkmcnt(0)")
    srd(24,16,0x10000000); srd(44,10,3670016)
    e("s_cmp_ge_u32 s3, 7"); e("s_cselect_b32 s6, s8, s4"); e("s_cselect_b32 s7, s9, s5")
    e(f"s_cselect_b32 s35, {OB-OA}, 0"); e("s_cselect_b32 s41, 7, 0"); e("s_cselect_b32 s40, 896, 0")
    e("s_add_u32 s32, s32, s35"); e(f"s_add_u32 s32, s32, {OA}"); e("s_sub_u32 s3, s3, s41")
    srd(28,6,401408); e("s_mov_b32 s33, 896"); e("s_lshl_b32 s34, s3, 7")
    gemm_core(64)
    epi_pos_n(64)
    e("s_lshl_b32 s35, s3, 6"); e("v_add_u32 v3, s35, v3")
    for g in range(4):
        e(f"v_add_u32 v4, {8*g}, v3")
        for tm in range(2):
            a=64+16*tm+4*g
            e(f"v_add_u32 v13, {32*tm}, v2"); e("v_mul_u32_u24 v14, 1792, v13"); e("v_lshl_add_u32 v14, v4, 1, v14"); e("v_add_u32 v14, s40, v14")
            e(f"v_cvt_pk_bf16_f32 v8, v{a}, v{a+1}"); e(f"v_cvt_pk_bf16_f32 v9, v{a+2}, v{a+3}")
            e("buffer_store_dwordx2 v[8:9], v14, s[44:47], 0 offen"); e("s_nop 1")
    lab("K3_END"); e("s_endpgm")

k1(); k2(); k3()
out=HDR+"\n".join(L)+"\n.section .rodata,\"a\"\n"
for n,v in (("k1_kernel",176),("k2_kernel",168),("k3_kernel",176)):
    out+=f""".p2align 6
.amdhsa_kernel {n}
  .amdhsa_next_free_vgpr {v}
  .amdhsa_next_free_sgpr 64
  .amdhsa_accum_offset {v}
  .amdhsa_group_segment_fixed_size 0
  .amdhsa_kernarg_size 88
  .amdhsa_user_sgpr_count 2
  .amdhsa_user_sgpr_kernarg_segment_ptr 1
  .amdhsa_system_sgpr_workgroup_id_x 1
.end_amdhsa_kernel
"""
open('concat_heads__grouped_kv_mqa__sliding_local_dilated__prompt.s','w').write(out)
```
